```python
import torch

def _softmax(x, axis=-1):
    return torch.softmax(x, dim=axis)
def _gelu(x):
    return torch.nn.functional.gelu(x, approximate="tanh")
def _silu(x):
    return torch.nn.functional.silu(x)
def _sigmoid(x):
    return torch.sigmoid(x)
def _layernorm(x, axis=-1, eps=1e-5):
    m = x.mean(dim=axis, keepdim=True)
    v = x.var(dim=axis, keepdim=True, unbiased=False)
    return (x - m) / torch.sqrt(v + eps)
def _scatter_add(tgt, idx, src, axis=0):
    return tgt.clone().index_add_(axis, idx, src)
def _segment_sum(src, seg, n):
    out = torch.zeros((n,) + src.shape[1:], dtype=src.dtype)
    return out.index_add_(0, seg, src)
def _pad(x, pw):
    flat = tuple(v for pair in reversed(pw) for v in pair)
    return torch.nn.functional.pad(x, flat)

kernel_name = 'standalone__kv_cache_quant_int4_int2_kv_with_per_channel_or_per_token_scales__prompt'

def setup_inputs():

    _w = (lambda a: (lambda t: t.to(torch.bfloat16) if t.is_floating_point() else t)(torch.as_tensor(a)))
    B = 1
    Sq = 2048
    Skv = 2048
    Hq = 32
    Hkv = 32
    Dh = 192
    bits = 3
    G = 32
    if G <= 0 or G >= Skv:
        G = max(1, Skv // 2)
    Skv = (Skv // G) * G
    ngk = Skv // G
    qmax = (1 << bits) - 1
    return {
        "q": _w((lambda *s: torch.randn(*s, dtype=torch.bfloat16) * 1.6)(B, Hq, Sq, Dh)),
        "qk": _w(torch.randint(0, qmax + 1, (B, Hkv, Skv, Dh)).to(torch.int32)),
        "qv": _w(torch.randint(0, qmax + 1, (B, Hkv, Skv, Dh)).to(torch.int32)),
        "k_scales": _w(torch.abs((lambda *s: torch.randn(*s, dtype=torch.bfloat16) * 1.6)(B, Hkv, ngk, Dh)) * 0.05 + 0.02),
        "k_zeros": _w((lambda *s: torch.randn(*s, dtype=torch.bfloat16) * 1.6)(B, Hkv, ngk, Dh) + float(qmax) / 2.0),
        "v_scales": _w(torch.abs((lambda *s: torch.randn(*s, dtype=torch.bfloat16) * 0.05)(B, Hkv, Skv, 1)) * 0.05 + 0.02),
        "v_zeros": _w((lambda *s: torch.randn(*s, dtype=torch.bfloat16) * 0.05)(B, Hkv, Skv, 1) + float(qmax) / 2.0),
    }

def reference(q, qk, qv, k_scales, k_zeros, v_scales, v_zeros):
    B, Hq, Sq, Dh = q.shape
    Hkv, Skv = qk.shape[1], qk.shape[2]
    ngk = k_scales.shape[2]
    G = Skv // ngk
    ks = (lambda x, n, axis: torch.repeat_interleave(x, n, dim=axis))(k_scales, G, axis=2)
    kz = (lambda x, n, axis: torch.repeat_interleave(x, n, dim=axis))(k_zeros, G, axis=2)
    k = ((lambda x, dt: x.to(dt))(qk, q.dtype) - kz) * ks
    v = ((lambda x, dt: x.to(dt))(qv, q.dtype) - v_zeros) * v_scales
    rep = Hq // Hkv
    if rep > 1:
        k = (lambda x, n, axis: torch.repeat_interleave(x, n, dim=axis))(k, rep, axis=1)
        v = (lambda x, n, axis: torch.repeat_interleave(x, n, dim=axis))(v, rep, axis=1)
    scale = float(Dh) ** -0.5
    logits = torch.einsum("bhqd,bhkd->bhqk", q, k) * scale
    p = _softmax(logits, axis=-1)
    o = torch.einsum("bhqk,bhkd->bhqd", p, v)
    return o
```

```python
import re
TRANS = ("v_exp_f32", "v_log_f32", "v_rcp_f32", "v_rsq_f32", "v_sqrt_f32")
def regs_of(op):
    op = op.strip()
    m = re.fullmatch(r"-?(?:abs\()?\|?([vas])\[(\d+):(\d+)\]\|?\)?", op)
    if m: return [(m.group(1), i) for i in range(int(m.group(2)), int(m.group(3)) + 1)]
    m = re.fullmatch(r"-?(?:abs\()?\|?([vas])(\d+)\|?\)?", op)
    if m: return [(m.group(1), int(m.group(2)))]
    if op == "vcc": return [("s", 106), ("s", 107)]
    if op == "exec": return [("s", 126), ("s", 127)]
    if op == "m0": return [("s", 124)]
    return []
class I:
    __slots__ = ("text", "op", "rd", "wr", "kind", "cost", "passes", "srcc", "ab", "note")
    def __init__(self, text):
        self.text = text
        t = text.split(";")[0].strip()
        parts = t.split(None, 1)
        self.op = op = parts[0]
        rest = parts[1] if len(parts) > 1 else ""
        ops = [o.strip() for o in rest.split(",")] if rest else []
        if ops:
            last = ops[-1].split()
            ops[-1] = last[0] if last else ""
            mods = last[1:]
        else: mods = []
        self.rd, self.wr = [], []
        self.passes = 0; self.srcc = []; self.ab = []
        self.cost = 1
        R = lambda o: regs_of(o)
        if op.startswith("v_mfma"):
            self.kind = "mfma"; self.wr = R(ops[0]); self.ab = R(ops[1]) + R(ops[2]); self.srcc = R(ops[3])
            self.rd = self.ab + self.srcc
            self.passes = 4 if "16x16x32" in op else 8
        elif op.startswith("v_cmp"):
            self.kind = "valu"; self.wr = R(ops[0]); self.rd = sum((R(o) for o in ops[1:]), [])
        elif op.startswith("v_readfirstlane") or op.startswith("v_readlane"):
            self.kind = "valu"; self.wr = R(ops[0]); self.rd = sum((R(o) for o in ops[1:]), [])
        elif op.startswith("v_permlane") and "swap" in op:
            self.kind = "valu"; self.wr = R(ops[0]) + R(ops[1]); self.rd = list(self.wr)
        elif op.startswith("v_"):
            self.kind = "valu"; self.wr = R(ops[0]); self.rd = sum((R(o) for o in ops[1:]), [])
            if op.startswith("v_fmac") or op.startswith("v_pk_fmac") or op.startswith("v_dot2c"): self.rd += self.wr
            if op.startswith("v_cndmask") and len(ops) == 3: self.rd += R("vcc")
            if op.split("_e")[0] in TRANS or op in TRANS: self.cost = 2
        elif op.startswith("ds_read") or op.startswith("ds_bpermute") or op.startswith("ds_swizzle"):
            self.kind = "ds"; self.wr = R(ops[0]); self.rd = sum((R(o) for o in ops[1:]), [])
        elif op.startswith("ds_"):
            self.kind = "ds"; self.rd = sum((R(o) for o in ops), [])
        elif op.startswith("buffer_load") or op.startswith("global_load"):
            self.kind = "vmem"
            if "lds" in mods or "_lds_" in op:
                self.rd = sum((R(o) for o in ops), []) + R("m0"); self.note = "dma"
            else:
                self.wr = R(ops[0]); self.rd = sum((R(o) for o in ops[1:]), [])
        elif op.startswith("buffer_atomic") or op.startswith("global_atomic"):
            self.kind = "vmem"; self.rd = sum((R(o) for o in ops), [])
            if "sc0" in mods: self.wr = R(ops[0])
        elif op.startswith("buffer_store") or op.startswith("global_store"):
            self.kind = "vmem"; self.rd = sum((R(o) for o in ops), [])
        elif op.startswith("buffer_"):
            self.kind = "vmem"
        elif op.startswith("s_load") or op.startswith("s_memtime") or op.startswith("s_memrealtime"):
            self.kind = "smem"; self.wr = R(ops[0]); self.rd = sum((R(o) for o in ops[1:]), [])
        elif op == "s_waitcnt": self.kind = "wait"
        elif op == "s_nop": self.kind = "nop"; self.cost = int(ops[0], 0) + 1
        elif op.startswith("s_cmp") or op.startswith("s_cbranch") or op in ("s_branch", "s_barrier", "s_endpgm", "s_setprio", "s_sleep", "s_setpc_b64"):
            self.kind = "salu"; self.rd = sum((R(o) for o in ops), [])
            if "vcc" in op: self.rd += R("vcc")
        elif op.startswith("s_"):
            self.kind = "salu"; self.wr = R(ops[0]) if ops else []; self.rd = sum((R(o) for o in ops[1:]), [])
            if "saveexec" in op: self.wr += R("exec")
        else:
            raise ValueError("unknown instr: " + text)
def is_instr(line):
    t = line.split(";")[0].strip()
    return bool(t) and not t.endswith(":") and not t.startswith(".")
def check(lines, name=""):
    ins = [I(l) for l in lines if is_instr(l)]
    probs = []
    pos = 0
    lastw = {}
    lastc = {}
    lastst = {}
    lg, vm = [], []
    for x in ins:
        mo = re.search(r"offset:(\d+)", x.text)
        if mo and ((x.kind == "vmem" and int(mo.group(1)) > 4095) or int(mo.group(1)) > 65535): probs.append(f"{name}: offset too big {x.text}")
        n = x.cost if x.kind == "nop" else 1
        def dist(p): return pos - p - 1
        for r in x.rd + x.wr:
            for q, nm in ((lg, "lgkm"), (vm, "vm")):
                for (y) in q:
                    if r in y.wr: probs.append(f"{name}: {x.text!r} touches {r} pending from {y.text!r} ({nm})")
        for r in x.rd:
            if r not in lastw: continue
            p, y = lastw[r]; d = dist(p); need = 0
            if y.kind == "valu" and r[0] in "va":
                if x.kind == "mfma": need = 2
                elif x.op.startswith("v_permlane") or "dpp" in x.text or "row_" in x.text: need = 2
                elif x.op.startswith("v_readfirstlane") or x.op.startswith("v_readlane"): need = 1
                elif y.cost == 2 and x.kind == "valu" and x.cost != 2: need = 1
                elif y.cost == 2 and x.kind in ("vmem", "ds"): need = 1
            if y.kind == "valu" and r[0] == "s":
                if x.kind == "valu": need = 4 if x.op.startswith("v_readlane") or x.op.startswith("v_writelane") else 2
                elif x.kind == "vmem": need = 5
                elif x.kind == "mfma": need = 4
            if y.kind == "salu" and r == ("s", 124) and x.kind == "vmem": need = 1
            if y.kind == "mfma":
                if x.kind == "mfma":
                    if r in x.ab: need = {4: 8, 8: 12}[y.passes]
                    elif r in x.srcc and (x.srcc != y.wr or x.passes != y.passes): need = {4: 6, 8: 10}[y.passes]
                else: need = {4: 8, 8: 12}[y.passes]
            if d < need: probs.append(f"{name}: RAW {y.text!r} -> {x.text!r} dist {d} < {need} ({r})")
        for r in x.wr:
            if r in lastw:
                p, y = lastw[r]; d = dist(p)
                if y.kind == "mfma" and x.kind != "mfma":
                    need = {4: 8, 8: 12}[y.passes]
                    if d < need: probs.append(f"{name}: WAW {y.text!r} -> {x.text!r} dist {d} < {need}")
                if y.kind == "mfma" and x.kind == "mfma" and x.srcc != y.wr:
                    need = {4: 6, 8: 10}[y.passes]
                    if d < need: probs.append(f"{name}: WAW-mfma {y.text!r} -> {x.text!r} dist {d} < {need}")
            if r in lastc and x.kind in ("valu",):
                p, y = lastc[r]; d = dist(p); need = {4: 3, 8: 7}[y.passes]
                if d < need: probs.append(f"{name}: WAR srcC {y.text!r} -> {x.text!r} dist {d} < {need}")
            if r in lastst and x.kind in ("valu", "mfma", "ds", "vmem"):
                d = dist(lastst[r])
                if d < 2: probs.append(f"{name}: WAR store-data -> {x.text!r} dist {d} < 2")
        if x.kind == "wait":
            m = re.search(r"lgkmcnt\((\d+)\)", x.text)
            if m:
                k = int(m.group(1))
                if any(y.kind == "smem" for y in lg) and k != 0: probs.append(f"{name}: counted lgkm with smem pending: {x.text}")
                lg = lg[len(lg) - k:] if k and len(lg) > k else ([] if k == 0 else lg)
            m = re.search(r"vmcnt\((\d+)\)", x.text)
            if m:
                k = int(m.group(1)); vm = vm[len(vm) - k:] if k and len(vm) > k else ([] if k == 0 else vm)
        pos += n
        for r in x.wr: lastw[r] = (pos - 1, x)
        if x.kind == "mfma":
            for r in x.srcc: lastc[r] = (pos - 1, x)
        if x.kind == "vmem" and "store" in x.op and ("x4" in x.op or "x3" in x.op):
            for r in regs_of(x.text.split(None, 1)[1].split(",")[0]): lastst[r] = pos - 1
        if x.kind in ("ds", "smem"):
            lg.append(x)
            if len(lg) > 15: probs.append(f"{name}: lgkm overflow >15 at {x.text}")
        if x.kind == "vmem":
            vm.append(x)
            if len(vm) > 63: probs.append(f"{name}: vmcnt overflow >63 at {x.text}")
    return probs
```

```python
import sys, math, struct
sys.path.insert(0, "dev")
import asmlib
NAME = "standalone__kv_cache_quant_int4_int2_kv_with_per_channel_or_per_token_scales__prompt"
WSV = 25165824
WS_BYTES = 50331648
def f2u(x): return struct.unpack("<I", struct.pack("<f", x))[0]
CFOLD = f2u(192 ** -0.5 * math.log2(math.e))

class Opt:
    stamps = False
    rd2 = True
    nslot = 4
O = Opt()

def vr(b, n=4): return f"v[{b}:{b+n-1}]"
def ar(b, n=4): return f"a[{b}:{b+n-1}]"

class P:
    def __init__(s): s.L = []
    def __call__(s, t):
        for x in t.split("\n"):
            x = x.strip()
            if x: s.L.append(x if x.endswith(":") or x.startswith(".") else "    " + x)
    def ext(s, l):
        for x in l: s(x)
    def text(s): return "\n".join(s.L) + "\n"

def srd(p, d, lo, hi, size):
    p(f"s_mov_b32 s{d}, s{lo}\ns_mov_b32 s{d+1}, s{hi}\ns_mov_b32 s{d+2}, {size}\ns_mov_b32 s{d+3}, 0x00020000")

def prep():
    p = P()
    p("prep_kernel:")
    p("s_cmp_ge_u32 s2, 1024\ns_cbranch_scc1 PREP_END")
    p("s_load_dwordx4 s[4:7], s[0:1], 8")
    p("s_load_dwordx8 s[8:15], s[0:1], 24")
    p("s_load_dwordx2 s[16:17], s[0:1], 72")
    p("v_lshrrev_b32 v1, 6, v0\nv_and_b32 v0, 63, v0\ns_nop 0\nv_readfirstlane_b32 s18, v1")
    p("s_lshl_b32 s19, s2, 1\ns_and_b32 s20, s18, 1\ns_add_u32 s19, s19, s20")
    p("s_mul_i32 s21, s19, 24576\ns_add_u32 s22, s21, 12288")
    p("s_mul_i32 s23, s19, 12288")
    p("s_waitcnt lgkmcnt(0)")
    srd(p, 36, 16, 17, WS_BYTES)
    p("s_cmp_ge_u32 s18, 2\ns_cbranch_scc1 PREP_V")
    srd(p, 24, 4, 5, 50331648)
    srd(p, 28, 8, 9, 786432)
    srd(p, 32, 10, 11, 786432)
    X = 56; ZP = 8; SP = 20; ZU = 32; SU = 40; T = 48
    p("v_and_b32 v1, 7, v0\nv_lshrrev_b32 v2, 3, v0")
    p("v_mul_u32_u24 v3, 768, v1\nv_lshl_add_u32 v3, v2, 5, v3")
    p("v_lshlrev_b32 v4, 4, v2")
    p("v_lshlrev_b32 v5, 8, v2\nv_lshl_add_u32 v5, v1, 4, v5")
    p("v_add_u32 v6, 6144, v3\nv_add_u32 v7, 4096, v5")
    p("s_mul_i32 s40, s19, 384")
    for m in range(3):
        p(f"buffer_load_dwordx4 {vr(ZP+4*m)}, v4, s[32:35], s40 offen offset:{m*128}")
        p(f"buffer_load_dwordx4 {vr(SP+4*m)}, v4, s[28:31], s40 offen offset:{m*128}")
    for m in range(3):
        for r in range(4):
            b = X + (m*4 + r)*8
            va = "v3" if r % 2 == 0 else "v6"; so = "s21" if r < 2 else "s22"
            p(f"buffer_load_dwordx4 {vr(b)}, {va}, s[24:27], {so} offen offset:{m*256}")
            p(f"buffer_load_dwordx4 {vr(b+4)}, {va}, s[24:27], {so} offen offset:{m*256+16}")
    p(f"s_mov_b32 s41, {CFOLD}\ns_mov_b32 s42, 0xffff0000")
    p("s_add_u32 s43, s23, 6144")
    nst = 0
    for m in range(3):
        for r in range(4):
            left = 24 - 2*(m*4 + r + 1)
            p(f"s_waitcnt vmcnt({left + nst})")
            if r == 0:
                for j in range(4):
                    p(f"v_lshlrev_b32 v{ZU+2*j}, 16, v{ZP+4*m+j}\nv_and_b32 v{ZU+2*j+1}, s42, v{ZP+4*m+j}")
                    p(f"v_lshlrev_b32 v{SU+2*j}, 16, v{SP+4*m+j}\nv_and_b32 v{SU+2*j+1}, s42, v{SP+4*m+j}")
            b = X + (m*4 + r)*8
            def stage(f):
                for j in range(4): f(j)
            stage(lambda j: p(f"v_cvt_f32_i32 v{b+2*j}, v{b+2*j}\nv_cvt_f32_i32 v{b+2*j+1}, v{b+2*j+1}"))
            def rnd():
                stage(lambda j: p(f"v_cvt_pk_bf16_f32 v{T+j}, v{b+2*j}, v{b+2*j+1}"))
                stage(lambda j: p(f"v_lshlrev_b32 v{b+2*j}, 16, v{T+j}\nv_and_b32 v{b+2*j+1}, s42, v{T+j}"))
            rnd()
            for e in range(8): p(f"v_sub_f32 v{b+e}, v{b+e}, v{ZU+e}")
            rnd()
            for e in range(8): p(f"v_mul_f32 v{b+e}, v{b+e}, v{SU+e}")
            rnd()
            for e in range(8): p(f"v_mul_f32 v{b+e}, s41, v{b+e}")
            stage(lambda j: p(f"v_cvt_pk_bf16_f32 v{b+j}, v{b+2*j}, v{b+2*j+1}"))
            so = "s23" if r < 2 else "s43"
            p(f"buffer_store_dwordx4 {vr(b)}, {'v5' if m < 2 else 'v7'}, s[36:39], {so} offen offset:{(m%2)*2048 + (r%2)*128}")
            nst += 1
    p("s_endpgm")
    p("PREP_V:")
    srd(p, 24, 6, 7, 50331648)
    srd(p, 28, 12, 13, 131072)
    srd(p, 32, 14, 15, 131072)
    X = 56; ZP = 8; SP = 12; ZU = 16; SU = 24; T = 32; OUT = 36
    p("v_and_b32 v1, 15, v0\nv_lshrrev_b32 v2, 4, v0")
    p("v_mul_u32_u24 v3, 3072, v2\nv_lshl_add_u32 v4, v1, 4, v3\nv_lshl_add_u32 v3, v1, 5, v3")
    p("v_lshlrev_b32 v5, 3, v2")
    p("v_lshlrev_b32 v6, 4, v0")
    p("s_lshl_b32 s40, s19, 6")
    p(f"buffer_load_dwordx2 {vr(ZP,2)}, v5, s[32:35], s40 offen\nbuffer_load_dwordx2 {vr(ZP+2,2)}, v5, s[32:35], s40 offen offset:32")
    p(f"buffer_load_dwordx2 {vr(SP,2)}, v5, s[28:31], s40 offen\nbuffer_load_dwordx2 {vr(SP+2,2)}, v5, s[28:31], s40 offen offset:32")
    def xr(part, j, e): return X + (part*8 + j)*4 + e
    for part in range(3):
        for j in range(8):
            so = "s21" if j < 4 else "s22"
            if part < 2: p(f"buffer_load_dwordx4 {vr(xr(part,j,0))}, v3, s[24:27], {so} offen offset:{(j%4)*768 + part*16}")
            else: p(f"buffer_load_dwordx4 {vr(xr(part,j,0))}, v4, s[24:27], {so} offen offset:{(j%4)*768 + 512}")
    p(f"s_mov_b32 s42, 0xffff0000\ns_add_u32 s23, s23, {WSV}\ns_add_u32 s43, s23, 4096\ns_add_u32 s44, s23, 8192")
    nst = 0
    for part in range(3):
        p(f"s_waitcnt vmcnt({16 - 8*part + nst})")
        if part == 0:
            for j in range(4):
                p(f"v_lshlrev_b32 v{ZU+2*j}, 16, v{ZP+j}\nv_and_b32 v{ZU+2*j+1}, s42, v{ZP+j}")
                p(f"v_lshlrev_b32 v{SU+2*j}, 16, v{SP+j}\nv_and_b32 v{SU+2*j+1}, s42, v{SP+j}")
        for e in range(4):
            R = [xr(part, j, e) for j in range(8)]
            for r in R: p(f"v_cvt_f32_i32 v{r}, v{r}")
            def rnd():
                for jj in range(4): p(f"v_cvt_pk_bf16_f32 v{T+jj}, v{R[2*jj]}, v{R[2*jj+1]}")
                for jj in range(4): p(f"v_lshlrev_b32 v{R[2*jj]}, 16, v{T+jj}\nv_and_b32 v{R[2*jj+1]}, s42, v{T+jj}")
            rnd()
            for j in range(8): p(f"v_sub_f32 v{R[j]}, v{R[j]}, v{ZU+j}")
            rnd()
            for j in range(8): p(f"v_mul_f32 v{R[j]}, v{R[j]}, v{SU+j}")
            o = OUT + 4*e
            for jj in range(4): p(f"v_cvt_pk_bf16_f32 v{o+jj}, v{R[2*jj]}, v{R[2*jj+1]}")
            so = ["s23", "s43", "s44"][part]
            p(f"buffer_store_dwordx4 {vr(o)}, v6, s[36:39], {so} offen offset:{e*1024}")
            nst += 1
    p("PREP_END:\ns_endpgm")
    return p

SBUF = [64, 96]; NEGM = 128; LS = 144; TMP = 152; RING = 160
def qreg(qb, ks):
    i = ks*4 + qb
    return vr(192 + 4*i) if i < 8 else ar(192 + 4*(i-8))
def oreg(qb, db): return ar((qb*12 + db)*4)
def sreg(n, qb, tb): return SBUF[n & 1] + qb*8 + tb*4
SLOT = 24576
def lds_addr(slot, off):
    a = slot*SLOT + off
    return ("v1", a) if a < 49152 else ("v2", a - 49152)

class VM:
    def __init__(s): s.q = []
    def issue(s, tag): s.q.append(tag)
    def need(s, tag):
        idx = max([i for i, t in enumerate(s.q) if t == tag], default=-1)
        n = len(s.q) - 1 - idx
        if idx >= 0: s.q = s.q[idx+1:]
        return n if idx >= 0 else None

def frag_read(kind, unit, f, par):
    slot = (unit if kind == "pv" else unit - 2) % O.nslot
    base, off = lds_addr(slot, (0 if kind == "pv" else 12288) + f*1024)
    return f"ds_read_b128 {vr(RING + par*16 + (f % 4)*4)}, {base} offset:{off}"
def group_mfmas(kind, unit, gi, par):
    out = []
    for k in range(4):
        f = gi*4 + k; fr = vr(RING + par*16 + k*4)
        for qb in range(4):
            if kind == "pv":
                out.append(f"v_mfma_f32_16x16x32_bf16 {oreg(qb,f)}, {vr(sreg(unit,qb,0))}, {fr}, {oreg(qb,f)}")
            else:
                tb, ks = divmod(f, 6); d = vr(sreg(unit, qb, tb))
                c = vr(NEGM + 4*qb) if ks == 0 else d
                out.append(f"v_mfma_f32_16x16x32_bf16 {d}, {fr}, {qreg(qb,ks)}, {c}")
    return out
def softmax_items(unit):
    E, Pst = [], []
    for qb in range(4):
        b = sreg(unit, qb, 0)
        for r in range(8): E.append((f"v_exp_f32 v{b+r}, v{b+r}", b+r))
        for h in range(4):
            Pst.append((f"v_add_f32 v{LS+2*qb}, v{LS+2*qb}, v{b+2*h}", [b+2*h]))
            Pst.append((f"v_add_f32 v{LS+2*qb+1}, v{LS+2*qb+1}, v{b+2*h+1}", [b+2*h+1]))
            Pst.append((f"v_cvt_pk_bf16_f32 v{b+h}, v{b+2*h}, v{b+2*h+1}", [b+2*h, b+2*h+1]))
    return E, Pst
def dma_items(t):
    slot = t % O.nslot; out = []
    for i in range(6):
        pre = None
        if i == 0: pre = f"s_add_u32 m0, s21, {slot*SLOT}"
        if i == 4: pre = f"s_add_u32 m0, s21, {slot*SLOT + 4096}"
        va = "v1" if i < 4 else "v3"
        out.append((pre, f"buffer_load_dwordx4 {va}, s[8:11], s20 offen offset:{(i%4)*1024} lds"))
    return out

class Stream:
    def __init__(s, p): s.p = p; s.par = 0; s.vm = VM()
    def body(s, n, groups, nxt, sm_unit=None, dma_t=None, bar_tag=None, extra=None, cap=2):
        p = s.p
        G = len(groups); N = 16*G
        mf = []; pars = []
        for g in groups:
            pars.append(s.par); mf += group_mfmas(g[0], g[1], g[2], s.par); s.par ^= 1
        gaps = [[] for _ in range(N)]; free = [cap]*N
        pre = [[] for _ in range(N)]
        def put(k, t, c=1): gaps[k].append(t); free[k] -= c
        seq = groups[1:] + ([nxt] if nxt else [])
        for gi, g in enumerate(seq):
            rd = [frag_read(g[0], g[1], g[2]*4 + k, pars[gi] ^ 1) for k in range(4)]
            pos = [1, 1, 3, 3] if O.rd2 else [1, 3, 5, 7]
            for k in range(4): put(16*gi + pos[k], rd[k])
        dpos = []
        if dma_t is not None:
            lastg = G - 1
            span = 16*lastg if lastg > 0 else 16
            items = dma_items(dma_t)
            for i, (pr, d) in enumerate(items):
                k = 5 + (i*(span - 6))//6
                k |= 1
                while free[k] < 1: k += 1
                if pr:
                    kk = k - 1
                    while free[kk] < 1: kk -= 1
                    put(kk, pr)
                put(k, d); dpos.append(k)
            k = dpos[-1] + 1
            while free[k] < 1: k += 1
            put(k, "s_add_u32 s20, s20, 12288")
        for gi in range(1, G): free[16*gi - 1] -= 1
        if nxt: free[N-1] -= 1
        bar_at = 16*(G-1) if bar_tag is not None else None
        if bar_at is not None and bar_at > 0: free[bar_at-1] -= 1
        if sm_unit is not None:
            E, Pst = softmax_items(sm_unit)
            cand = [k for k in range(N - 6) if free[k] >= 2]
            epos = {}
            if len(cand) >= len(E) + 8:
                for i, (t, r) in enumerate(E):
                    k = cand[(i*len(cand))//len(E)]; put(k, t, 2); epos[r] = k
            else:
                for i, (t, r) in enumerate(E):
                    k = (i*(N-4))//len(E); put(k, t, 2); epos[r] = k
            k = 0
            for t, deps in Pst:
                k = max(k, max(epos[r] for r in deps) + 1)
                kk = k
                while kk < N - 1 and free[kk] < 1: kk += 1
                if free[kk] < 1: kk = k
                put(kk, t); k = kk
        if extra:
            extra(gaps, free, put, N)
        for i in range(N):
            if i % 16 == 0:
                if bar_at is not None and i == bar_at:
                    nv = s.vm.need(bar_tag)
                    p(f"s_waitcnt vmcnt({nv}) lgkmcnt(0)" if nv is not None else "s_waitcnt lgkmcnt(0)")
                    p("s_barrier")
                elif i > 0 or True:
                    p("s_waitcnt lgkmcnt(0)")
            p(mf[i])
            for t in gaps[i]:
                p(t)
                if t.endswith(" lds"): s.vm.issue(("T", dma_t))
        s.free = free

def grp(kind, unit): return [(kind, unit, i) for i in range(3)]

def lreduce(p):
    out = []
    for qb in range(4): out.append(f"v_add_f32 v{LS+2*qb}, v{LS+2*qb}, v{LS+2*qb+1}")
    for qb in range(4): out.append(f"v_mov_b32 v{LS+2*qb+1}, v{LS+2*qb}")
    out.append("s_nop 0")
    for qb in range(4): out.append(f"v_permlane32_swap_b32 v{LS+2*qb}, v{LS+2*qb+1}")
    out.append("s_nop 0")
    for qb in range(4): out.append(f"v_add_f32 v{LS+2*qb}, v{LS+2*qb}, v{LS+2*qb+1}")
    for qb in range(4): out.append(f"v_mov_b32 v{LS+2*qb+1}, v{LS+2*qb}")
    out.append("s_nop 0")
    for qb in range(4): out.append(f"v_permlane16_swap_b32 v{LS+2*qb}, v{LS+2*qb+1}")
    out.append("s_nop 0")
    for qb in range(4): out.append(f"v_add_f32 v{LS+2*qb}, v{LS+2*qb}, v{LS+2*qb+1}")
    return out
RL = 4
def ltranspose():
    out = []
    for qb in range(4): out.append(f"v_rcp_f32 v{LS+2*qb+1}, v{LS+2*qb}")
    out.append("s_nop 0")
    for qb in range(4): out.append(f"ds_write_b32 v20, v{LS+2*qb+1} offset:{qb*64}")
    out.append("s_waitcnt lgkmcnt(0)")
    for qb in range(4): out.append(f"ds_read_b128 {vr(RL+4*qb)}, v21 offset:{qb*64}")
    return out

def main_kernel():
    p = P()
    K = NAME + "_kernel"
    p(K + ":")
    p("s_cmp_ge_u32 s2, 256\ns_cbranch_scc1 MAIN_END")
    p("s_load_dwordx2 s[24:25], s[0:1], 0")
    p("s_load_dwordx2 s[26:27], s[0:1], 56")
    p("s_load_dwordx2 s[28:29], s[0:1], 72")
    if O.stamps: p("s_load_dwordx2 s[44:45], s[0:1], 64\ns_memtime s[50:51]")
    p("v_lshrrev_b32 v4, 6, v0\nv_and_b32 v0, 63, v0\ns_nop 0\nv_readfirstlane_b32 s16, v4")
    p("s_and_b32 s17, s2, 7\ns_lshr_b32 s18, s2, 3\ns_lshl_b32 s17, s17, 2\ns_lshr_b32 s19, s18, 3\ns_add_u32 s17, s17, s19\ns_and_b32 s18, s18, 7")
    p("v_lshlrev_b32 v1, 4, v0\nv_add_u32 v2, 49152, v1\nv_add_u32 v3, 4096, v1")
    p("s_mul_i32 s22, s17, 786432")
    p("s_mul_i32 s21, s16, 6144")
    p("s_and_b32 s30, s16, 1\ns_mul_i32 s30, s30, 6144\ns_add_u32 s20, s22, s30")
    p(f"s_add_u32 s30, s20, {WSV - 24576}\ns_cmp_lt_u32 s16, 2\ns_cselect_b32 s20, s30, s20")
    p("s_lshl_b32 s30, s18, 2\ns_add_u32 s30, s30, s16\ns_mul_i32 s30, s30, 24576\ns_add_u32 s23, s22, s30")
    p("v_and_b32 v5, 15, v0\nv_lshrrev_b32 v6, 4, v0")
    p("v_mul_u32_u24 v7, 384, v5\nv_lshl_add_u32 v7, v6, 4, v7")
    p("s_waitcnt lgkmcnt(0)")
    srd(p, 8, 28, 29, WS_BYTES)
    srd(p, 4, 24, 25, 25165824)
    srd(p, 12, 26, 27, 25165824)
    st = Stream(p)
    def dma_now(t):
        for pr, d in dma_items(t):
            if pr: p(pr + "\ns_nop 0")
            p(d); st.vm.issue(("T", t))
        p("s_add_u32 s20, s20, 12288")
    dma_now(-2)
    for qb in range(1, 4): p(f"s_add_u32 s{30+qb}, s23, {qb*6144}")
    for ks in range(6):
        for qb in range(4):
            so = "s23" if qb == 0 else f"s{30+qb}"
            p(f"buffer_load_dwordx4 {qreg(qb,ks)}, v7, s[4:7], {so} offen offset:{ks*64}"); st.vm.issue("Q")
    dma_now(-1); dma_now(0)
    for i in range(192): p(f"v_accvgpr_write_b32 a{i}, 0")
    for i in range(24): p(f"v_mov_b32 v{NEGM+i}, 0")
    p("v_mul_u32_u24 v22, 1536, v6\nv_lshl_add_u32 v23, v5, 3, v22\nv_add_u32 v23, 256, v23\nv_lshl_add_u32 v22, v5, 4, v22")
    p(f"s_lshl_b32 s30, s16, 8\ns_add_u32 s30, s30, {O.nslot*SLOT}")
    p("v_lshl_add_u32 v20, v5, 2, s30\nv_lshl_add_u32 v21, v6, 4, s30")
    p(f"s_waitcnt vmcnt({st.vm.need('Q')})\ns_barrier")
    if O.stamps: p("s_memtime s[52:53]")
    for k in range(4): p(frag_read("qk", 0, k, 0))
    st.body(-2, grp("qk", 0), ("qk", 1, 0), dma_t=1, bar_tag=("T", -1))
    st.body(-1, grp("qk", 1), ("pv", 0, 0), sm_unit=0, dma_t=2, bar_tag=("T", 0), cap=3)
    if O.stamps: p("s_memtime s[54:55]")
    p("s_mov_b32 s34, 15")
    pro_end = len(p.L)
    p(".p2align 6\nLOOP:")
    l0 = len(p.L)
    for n in range(4):
        st.body(n, grp("pv", n) + grp("qk", n+2), ("pv", n+1, 0), sm_unit=n+1, dma_t=n+3, bar_tag=("T", n+1))
        if n == 0: print("free slots per body:", sum(max(f, 0) for f in st.free), "overfull:", [i for i, f in enumerate(st.free) if f < 0], file=sys.stderr)
    p("s_sub_u32 s34, s34, 1\ns_cmp_lg_u32 s34, 0\ns_cbranch_scc1 LOOP")
    l1 = len(p.L)
    st.body(4, grp("pv", 4) + grp("qk", 6), ("pv", 5, 0), sm_unit=5, dma_t=7, bar_tag=("T", 5))
    st.body(5, grp("pv", 5) + grp("qk", 7), ("pv", 6, 0), sm_unit=6, bar_tag=("T", 6))
    st.body(6, grp("pv", 6), ("pv", 7, 0), sm_unit=7, bar_tag=("T", 7), cap=3)
    def ex(gaps, free, put, N):
        items = lreduce(None) + [f"v_max3_f32 v{TMP}, v{LS}, v{LS+2}, v{LS+4}", f"v_min3_f32 v{TMP+1}, v{LS}, v{LS+2}, v{LS+4}",
                 f"v_max_f32 v{TMP}, v{TMP}, v{LS+6}", f"v_min_f32 v{TMP+1}, v{TMP+1}, v{LS+6}",
                 f"v_cmp_lt_f32 s[36:37], s35, v{TMP}", f"v_cmp_gt_f32 s[38:39], s40, v{TMP+1}"] + ltranspose()[:-5]
        k = 4
        for t in items:
            if t == "s_nop 0": k += 1; continue
            c = 2 if "rcp" in t else 1
            while free[k] < c: k += 1
            put(k, t, c)
            if c == 2: k += 1
        assert k < 32
        k = 33
        for t in ltranspose()[-4:]:
            while free[k] < 1: k += 1
            put(k, t)
    p(f"s_mov_b32 s35, {f2u(2.0**24)}\ns_mov_b32 s40, {f2u(2.0**-24)}")
    st.body(7, grp("pv", 7), None, extra=ex)
    p("s_or_b64 s[36:37], s[36:37], s[38:39]\ns_cmp_lg_u64 s[36:37], 0\ns_cbranch_scc1 SLOW")
    p("STORE:")
    if O.stamps: p("s_memtime s[56:57]")
    p("s_waitcnt lgkmcnt(0)\ns_nop 4")
    e0 = len(p.L)
    rows = [(qb, i) for qb in range(4) for i in range(4)]
    for ri, (qb, i) in enumerate(rows):
        t = 24 + (ri % 3)*12
        o = 64 + (ri % 8)*8
        for db in range(12): p(f"v_accvgpr_read_b32 v{t+db}, a{(qb*12+db)*4+i}")
        for db in range(12): p(f"v_mul_f32 v{t+db}, v{t+db}, v{RL+4*qb+i}")
        for j in range(6): p(f"v_cvt_pk_bf16_f32 v{o+j}, v{t+2*j}, v{t+2*j+1}")
        so = "s23" if qb == 0 else f"s{30+qb}"
        p(f"buffer_store_dwordx4 {vr(o)}, v22, s[12:15], {so} offen offset:{i*384}")
        p(f"buffer_store_dwordx2 {vr(o+4,2)}, v23, s[12:15], {so} offen offset:{i*384}")
    if O.stamps:
        p("s_memtime s[58:59]\ns_waitcnt vmcnt(0)\ns_memtime s[60:61]\ns_waitcnt lgkmcnt(0)")
        p("s_lshl_b32 s30, s2, 2\ns_add_u32 s30, s30, s16\ns_lshl_b32 s30, s30, 5")
        p("s_mov_b32 s62, s28\ns_mov_b32 s63, s29\ns_add_u32 s62, s62, 0x4000000\ns_addc_u32 s63, s63, 0\ns_mov_b32 s64, s62\ns_mov_b32 s65, s63\ns_mov_b32 s66, 0x100000\ns_mov_b32 s67, 0x00020000")
        for k, sr in enumerate([50, 52, 54, 56, 58, 60]): p(f"v_mov_b32 v{24+k}, s{sr}")
        p("v_mov_b32 v30, s51\nv_mov_b32 v31, 0\nv_mov_b32 v32, s30\ns_mov_b64 exec, 1")
        p("buffer_store_dwordx4 v[24:27], v32, s[64:67], 0 offen\nbuffer_store_dwordx4 v[28:31], v32, s[64:67], 0 offen offset:16")
    p("MAIN_END:\ns_endpgm")
    main_end = len(p.L)
    p("SLOW:")
    KF = 4
    MX = TMP
    def loadfr(so):
        for f in range(12):
            va = ["v1", "v3", "v52"][f // 4]
            p(f"buffer_load_dwordx4 {vr(KF+4*f)}, {va}, s[8:11], {so} offen offset:{(f%4)*1024}")
        p("s_waitcnt vmcnt(0)")
    def qk(czero):
        for f in range(12):
            tb, ks = divmod(f, 6)
            for qb in range(4):
                d = vr(sreg(0, qb, tb)); c = ("0" if czero else vr(NEGM+4*qb)) if ks == 0 else d
                p(f"v_mfma_f32_16x16x32_bf16 {d}, {vr(KF+4*f)}, {qreg(qb,ks)}, {c}")
        p("s_nop 7")
    p("s_waitcnt vmcnt(0) lgkmcnt(0)\nv_add_u32 v52, 8192, v1")
    for qb in range(4): p(f"v_mov_b32 v{MX+qb}, 0xff800000")
    p("s_mov_b32 s41, s22\ns_mov_b32 s34, 64\nSLOW1:")
    loadfr("s41"); qk(True)
    for qb in range(4):
        b = sreg(0, qb, 0)
        for h in range(4): p(f"v_max3_f32 v{MX+qb}, v{MX+qb}, v{b+2*h}, v{b+2*h+1}")
    p("s_add_u32 s41, s41, 12288\ns_sub_u32 s34, s34, 1\ns_cmp_lg_u32 s34, 0\ns_cbranch_scc1 SLOW1")
    for sw in ("v_permlane32_swap_b32", "v_permlane16_swap_b32"):
        for qb in range(4): p(f"v_mov_b32 v{MX+4+qb}, v{MX+qb}")
        p("s_nop 1")
        for qb in range(4): p(f"{sw} v{MX+qb}, v{MX+4+qb}")
        p("s_nop 1")
        for qb in range(4): p(f"v_max_f32 v{MX+qb}, v{MX+qb}, v{MX+4+qb}")
    for qb in range(4):
        for i in range(4): p(f"v_sub_f32 v{NEGM+4*qb+i}, 0, v{MX+qb}")
    for i in range(192): p(f"v_accvgpr_write_b32 a{i}, 0")
    for i in range(8): p(f"v_mov_b32 v{LS+i}, 0")
    p(f"s_mov_b32 s41, s22\ns_add_u32 s42, s22, {WSV}\ns_mov_b32 s34, 64\nSLOW2:")
    loadfr("s41"); qk(False)
    E, Pst = softmax_items(0)
    for t, _ in E: p(t)
    for t, _ in Pst: p(t)
    loadfr("s42")
    for f in range(12):
        for qb in range(4): p(f"v_mfma_f32_16x16x32_bf16 {oreg(qb,f)}, {vr(sreg(0,qb,0))}, {vr(KF+4*f)}, {oreg(qb,f)}")
    p("s_add_u32 s41, s41, 12288\ns_add_u32 s42, s42, 12288\ns_sub_u32 s34, s34, 1\ns_cmp_lg_u32 s34, 0\ns_cbranch_scc1 SLOW2")
    p("v_and_b32 v5, 15, v0\nv_lshrrev_b32 v6, 4, v0")
    p("v_mul_u32_u24 v22, 1536, v6\nv_lshl_add_u32 v23, v5, 3, v22\nv_add_u32 v23, 256, v23\nv_lshl_add_u32 v22, v5, 4, v22")
    p("v_lshl_add_u32 v20, v5, 2, s30\nv_lshl_add_u32 v21, v6, 4, s30")
    for t in lreduce(None): p(t if t != "s_nop 0" else "s_nop 1")
    for t in ltranspose(): p(t)
    p("s_branch STORE")
    lin = p.L[:l1] + p.L[l0:l1] + p.L[l1:main_end]
    probs = asmlib.check(lin, "main")
    probs += asmlib.check(p.L[main_end:] + p.L[e0-2:main_end], "slow")
    return p, probs

def desc(name, vg, acc):
    return f""".amdhsa_kernel {name}
  .amdhsa_next_free_vgpr {vg}
  .amdhsa_next_free_sgpr 102
  .amdhsa_accum_offset {acc}
  .amdhsa_group_segment_fixed_size 0
  .amdhsa_kernarg_size 80
  .amdhsa_user_sgpr_count 2
  .amdhsa_user_sgpr_kernarg_segment_ptr 1
  .amdhsa_system_sgpr_workgroup_id_x 1
.end_amdhsa_kernel
"""
def build(path):
    K = NAME + "_kernel"
    pp = prep(); pm, probs = main_kernel()
    probs += asmlib.check(pp.L, "prep")
    for x in probs[:40]: print("PROBLEM", x, file=sys.stderr)
    s = f"; generated by dev/gen.py\n; @launch kernel=prep_kernel grid=(1024,1,1) block=(256,1,1) lds=0\n"
    s += f"; @launch kernel={K} grid=(256,1,1) block=(256,1,1) lds={O.nslot*SLOT + 1024}\n"
    s += '.amdgcn_target "amdgcn-amd-amdhsa--gfx950"\n.text\n'
    s += f".globl prep_kernel\n.p2align 8\n.type prep_kernel,@function\n" + pp.text()
    s += f".globl {K}\n.p2align 8\n.type {K},@function\n" + pm.text()
    s += '.section .rodata,"a"\n.p2align 6\n' + desc("prep_kernel", 152, 152) + ".p2align 6\n" + desc(K, 512, 256)
    open(path, "w").write(s)
    return probs
if __name__ == "__main__":
    path = sys.argv[1] if len(sys.argv) > 1 else f"cdna_kernels/{NAME}.s"
    for a in sys.argv[2:]:
        k, v = a.split("="); setattr(O, k, int(v))
    build(path)
```

```python
import sys, math, struct, re
sys.path.insert(0, "dev")
import asmlib
NAME = "standalone__kv_cache_quant_int4_int2_kv_with_per_channel_or_per_token_scales__prompt"
WSV = 25165824
def f2u(x): return struct.unpack("<I", struct.pack("<f", x))[0]
CFOLD = f2u(192 ** -0.5 * math.log2(math.e))
class Opt:
    stamps = 0
    ph = 1
    nqa = 8
    pollb = 2
    pollk = 2
    spin = 4096
    dsc1 = 1
    ssc1 = 1
    nopoll = 0
    dbg = 0
    nt = 1
    nqb = 6
    qnt = 1
    dstep = 4
    late = 1
    pstart = 0
O = Opt()
def vr(b, n=4): return f"v[{b}:{b+n-1}]"
def ar(b, n=4): return f"a[{b}:{b+n-1}]"
class P:
    def __init__(s): s.L = []
    def __call__(s, t):
        for x in t.split("\n"):
            x = x.strip()
            if x: s.L.append(x if x.endswith(":") or x.startswith(".") else "    " + x)
    def n(s): return len(s.L)
def srd(p, d, lo, off, size):
    p(f"s_add_u32 s{d}, s{lo}, s{off}\ns_addc_u32 s{d+1}, s{lo+1}, 0\ns_mov_b32 s{d+2}, {size}\ns_mov_b32 s{d+3}, 0x00020000")

SBUF = [64, 96]; OUT = 128; LS = 144; TMP = 152; RING = 160; XR = 224
VS1, VS2, VD1, VD2, VC, VAO, VAD, VPL, VQ = 4, 5, 6, 7, 8, 9, 10, 12, 14
RAW = 24; RAW1 = 32; KA = 40; KB = 48
SX, SC, SD = 58, 59, 60
NSLOT = 4; SLOT = 24576; LDS_T = NSLOT*SLOT; LDS_AB = LDS_T + 1024
def qreg(qb, ks):
    i = ks*4 + qb
    return vr(192 + 4*i) if i < 8 else ar(192 + 4*(i-8))
def oreg(qb, db): return ar((qb*12 + db)*4)
def sreg(n, qb, tb): return SBUF[n & 1] + qb*8 + tb*4
def lds_addr(slot, off):
    a = slot*SLOT + off
    return ("v1", a) if a < 49152 else ("v2", a - 49152)
def frag_read(kind, unit, f, par):
    slot = (unit if kind == "pv" else unit - 2) % NSLOT
    base, off = lds_addr(slot, (0 if kind == "pv" else 12288) + f*1024)
    return f"ds_read_b128 {vr(RING + par*16 + (f % 4)*4)}, {base} offset:{off}"
def group_mfmas(kind, unit, gi, par):
    out = []
    for k in range(4):
        f = gi*4 + k; fr = vr(RING + par*16 + k*4)
        for qb in range(4):
            if kind == "pv":
                out.append(f"v_mfma_f32_16x16x32_bf16 {oreg(qb,f)}, {vr(sreg(unit,qb,0))}, {fr}, {oreg(qb,f)}")
            else:
                tb, ks = divmod(f, 6); d = vr(sreg(unit, qb, tb))
                out.append(f"v_mfma_f32_16x16x32_bf16 {d}, {fr}, {qreg(qb,ks)}, {'0' if ks == 0 else d}")
    return out
def softmax_items(unit):
    E, Pst = [], []
    for qb in range(4):
        b = sreg(unit, qb, 0)
        for r in range(8): E.append((f"v_exp_f32 v{b+r}, v{b+r}", b+r))
        for h in range(4):
            Pst.append((f"v_add_f32 v{LS+2*qb}, v{LS+2*qb}, v{b+2*h}", [b+2*h]))
            Pst.append((f"v_add_f32 v{LS+2*qb+1}, v{LS+2*qb+1}, v{b+2*h+1}", [b+2*h+1]))
            Pst.append((f"v_cvt_pk_bf16_f32 v{b+h}, v{b+2*h}, v{b+2*h+1}", [b+2*h, b+2*h+1]))
    return E, Pst
def dma_items(t, sr="s[8:11]", so="s20", adj=0):
    slot = t % NSLOT; out = []
    for i in range(6):
        pre = None
        if i == 0: pre = f"s_add_u32 m0, s21, {(slot*SLOT + adj) & 0xffffffff}"
        if i == 4: pre = f"s_add_u32 m0, s21, {(slot*SLOT + 4096 + adj) & 0xffffffff}"
        out.append((pre, f"buffer_load_dwordx4 {'v1' if i < 4 else 'v3'}, {sr}, {so} offen offset:{(i%4)*1024} sc1 lds ; @T{slot}"))
    return out

def kcoef(d, raw, h, need=None):
    a, b = d + 2*h, d + 4 + 2*h
    t = [f"v_lshlrev_b32 v{a}, 16, v{raw}", f"v_and_b32 v{a+1}, s62, v{raw}", f"v_lshlrev_b32 v{b}, 16, v{raw+4}", f"v_and_b32 v{b+1}, s62, v{raw+4}",
         f"v_mul_f32 v{a}, s61, v{a}", f"v_mul_f32 v{a+1}, s61, v{a+1}", f"v_mul_f32 v{b}, -v{b}, v{a}", f"v_mul_f32 v{b+1}, -v{b+1}, v{a+1}"]
    return [(x, need) for x in t]
def kdata(x, c, o, need=None):
    t = [f"v_cvt_f32_i32 v{x+e}, v{x+e}" for e in range(4)] + [f"v_fma_f32 v{x+e}, v{x+e}, v{c+e}, v{c+4+e}" for e in range(4)]
    t += [f"v_cvt_pk_bf16_f32 v{o}, v{x}, v{x+1}", f"v_cvt_pk_bf16_f32 v{o+1}, v{x+2}, v{x+3}"]
    return [(q, need) for q in t]
def kxload(X, i, so, tag):
    h, r = divmod(i, 4)
    return (f"buffer_load_dwordx4 {vr(X+4*i)}, v{VS1 if r % 2 == 0 else VS2}, s[24:27], {so} offen offset:{(r//2)*3072 + h*16}{' nt' if O.nt else ''} ; @{tag}", None)
def kstore(r, so): return (f"buffer_store_dwordx4 {vr(OUT+4*r)}, v{VD1 if r < 2 else VD2}, s[36:39], {so} offen offset:{(r%2)*128} sc1 ; @ST", None)
def cload(raw, h, so, off, tag):
    return [(f"buffer_load_dwordx2 {vr(raw+2*h,2)}, v{VC}, s[28:31], {so} offen offset:{off+8*h} ; @{tag}", None),
            (f"buffer_load_dwordx2 {vr(raw+4+2*h,2)}, v{VC}, s[32:35], {so} offen offset:{off+8*h} ; @{tag}", None)]
def kstep(s, X=XR, roll=True, sd=f"s{SD}"):
    h, q = divmod(s, 2); it = []
    c = KA if h == 0 else KB
    for r in (2*q, 2*q+1): it += kdata(X + 4*(4*h + r), c, OUT + 4*r + 2*h, f"X{s}")
    if h == 1: it += [kstore(2*q, sd), kstore(2*q+1, sd)]
    if roll:
        it += kcoef(KB, RAW + 2 + q, q, "CB") if h == 0 else kcoef(KA, RAW + q, q, "CA")
        if s == 1: it += cload(RAW, 1, f"s{SC}", 0, "CB")
        if s == 3:
            it += cload(RAW, 0, f"s{SC}", 1536, "CA")
            it += [(f"s_add_u32 s{SC}, s{SC}, 1536", None), (f"s_add_u32 s{SD}, s{SD}, 49152", None)]
    return it
def kreload(s):
    h, q = divmod(s, 2)
    return [kxload(XR, 4*h + r, f"s{SX}", f"X{s}") for r in (2*q, 2*q+1)] + ([(f"s_add_u32 s{SX}, s{SX}, 98304", None)] if s == 3 else [])
def vreload(s):
    return [vxload(XR, j, f"s{SX}", f"X{s}") for j in (2*s, 2*s+1)] + ([(f"s_add_u32 s{SX}, s{SX}, 98304", None)] if s == 3 else [])
def vxload(X, j, so, tag):
    return (f"buffer_load_dwordx4 {vr(X+4*j)}, v{VS1 if j < 4 else VS2}, s[24:27], {so} offen offset:{(j%4)*768}{' nt' if O.nt else ''} ; @{tag}", None)
def vstep(s, X=XR, roll=True, sd=f"s{SD}", raw=RAW):
    t = KA + 4*(s & 1); ct = "CA" if s < 2 else "CB"
    it = [(f"v_lshlrev_b32 v{t}, 16, v{raw+s}", ct), (f"v_and_b32 v{t+1}, s62, v{raw+s}", ct), (f"v_lshlrev_b32 v{t+2}, 16, v{raw+4+s}", ct), (f"v_and_b32 v{t+3}, s62, v{raw+4+s}", ct),
          (f"v_mul_f32 v{t+2}, -v{t+2}, v{t}", None), (f"v_mul_f32 v{t+3}, -v{t+3}, v{t+1}", None)]
    x0, x1 = X + 8*s, X + 8*s + 4
    it += [(f"v_cvt_f32_i32 v{x0+e}, v{x0+e}", f"X{s}") for e in range(8)]
    it += [(f"v_fma_f32 v{x0+e}, v{x0+e}, v{t}, v{t+2}", None) for e in range(4)] + [(f"v_fma_f32 v{x1+e}, v{x1+e}, v{t+1}, v{t+3}", None) for e in range(4)]
    it += [(f"v_cvt_pk_bf16_f32 v{OUT+4*e+s}, v{x0+e}, v{x1+e}", None) for e in range(4)]
    if s == 3: it += [(f"buffer_store_dwordx4 {vr(OUT+4*e)}, v1, s[36:39], {sd} offen offset:{e*1024} sc1 ; @ST", None) for e in range(4)]
    if roll:
        if s in (1, 3): it += cload(RAW, s//2, f"s{SC}", 0, ct)
        if s == 3: it += [(f"s_add_u32 s{SC}, s{SC}, 256", None), (f"s_add_u32 s{SD}, s{SD}, 49152", None)]
    return it
def emit_plain(p, items):
    seen = set()
    for t, need in items:
        if need and need not in seen: p(f"s_waitcnt vmcnt(@{need})"); seen.add(need)
        p(t)
def poll_check(lbl):
    return [(f"v_subrev_u32 v{VPL}, s48, v{VPL}", "POLL"), (f"v_cmp_lt_u32 vcc, 31, v{VPL}", None),
            (f"s_cbranch_vccnz SPIN_{lbl}\nRET_{lbl}:", None), ("s_add_u32 s48, s48, 1", None)]
POLL_LD = f"buffer_load_dword v{VPL}, v{VPL+1}, s[40:43], 0 offen sc1 ; @POLL"
FLAG = [(f"buffer_store_dword v{VAD}, v{VAO}, s[40:43], 0 offen sc1", None), (f"v_add_u32 v{VAD}, 1, v{VAD}", None)]
def spin_block(p, lbl):
    p(f"SPIN_{lbl}:\ns_cmp_lg_u32 s53, 0\ns_cbranch_scc1 RET_{lbl}\ns_mov_b32 s52, {O.spin}\nSPINL_{lbl}:\n{POLL_LD}\ns_waitcnt vmcnt(0)")
    p(f"v_subrev_u32 v{VPL}, s48, v{VPL}\ns_add_u32 s65, s65, 1\nv_cmp_lt_u32 vcc, 31, v{VPL}\ns_cbranch_vccz RET_{lbl}")
    p(f"s_sub_u32 s52, s52, 1\ns_cmp_lg_u32 s52, 0\ns_cbranch_scc1 SPINL_{lbl}")
    if lbl == "B0": p("s_mov_b32 s46, 0")
    p(f"s_mov_b32 s10, 0\ns_mov_b32 s53, 1\ns_branch RET_{lbl}")

class Stream:
    def __init__(s, p): s.p = p; s.par = 0
    def body(s, groups, nxt, sm_unit=None, dma_t=None, bar=None, prod=None, first=None, after_bar=None, fixed=None, reload=None, extra=None, cap=2, name=""):
        p = s.p; G = len(groups); N = 16*G
        mf = []; pars = []
        for g in groups:
            pars.append(s.par); mf += group_mfmas(g[0], g[1], g[2], s.par); s.par ^= 1
        gaps = [[] for _ in range(N)]; free = [cap]*N; needs = [set() for _ in range(G)]
        def put(k, t, c=1, need=None):
            gaps[k].append(t); free[k] -= c
            if need: needs[k // 16].add(need)
        seq = groups[1:] + ([nxt] if nxt else [])
        for gi, g in enumerate(seq):
            for k in range(4): put(16*gi + [1, 1, 3, 3][k], frag_read(g[0], g[1], g[2]*4 + k, pars[gi] ^ 1))
        for gi in range(1, G): free[16*gi - 1] -= 1
        if nxt: free[N-1] -= 1
        bar_at = 16*(G-1) if bar is not None else None
        if bar_at: free[bar_at-1] -= 1
        k0 = 0
        if first:
            for t, need in first:
                while free[k0] < 1: k0 += 1
                put(k0, t, 1, need)
        for k, t in (fixed or []):
            while free[k] < 1: k += 1
            put(k, t)
        if dma_t is not None:
            span = 16*(G-1); k = 0
            for i, (pr, d) in enumerate(dma_items(dma_t)):
                k = max(k0 + 2, (5 + i*O.dstep) if O.dstep else (5 + (i*(span - 6))//6) | 1)
                while free[k] < 1 or (pr and free[k-1] < 1): k += 1
                if pr: put(k-1, pr)
                put(k, d); k0 = k - 1
            k += 1
            while free[k] < 1: k += 1
            put(k, "s_add_u32 s20, s20, 12288" if not O.dbg & 4 else "s_nop 0")
            for t, need in (reload or []) if O.late else []:
                k += O.dstep if t.startswith("buffer") else 0
                while free[k] < 1: k += 1
                put(k, t)
        if after_bar:
            k = bar_at
            for t, need in after_bar:
                while free[k] < 1: k += 1
                put(k, t, 1, need)
        if sm_unit is not None:
            E, Pst = softmax_items(sm_unit)
            cand = [k for k in range(N - 6) if free[k] >= 2]
            epos = {}
            if len(cand) >= len(E) + 8:
                for i, (t, r) in enumerate(E):
                    k = cand[(i*len(cand))//len(E)]; put(k, t, 2); epos[r] = k
            else:
                for i, (t, r) in enumerate(E):
                    k = (i*(N-4))//len(E); put(k, t, 2); epos[r] = k
            k = 0
            for t, deps in Pst:
                k = max(k, max(epos[r] for r in deps) + 1)
                kk = k
                while kk < N - 1 and free[kk] < 1: kk += 1
                if free[kk] < 1: kk = k
                put(kk, t); k = kk
        if prod:
            avail = sum(max(f, 0) for f in free[O.pstart:])
            k = O.pstart; over = max(0, len(prod) - avail)
            for i, (t, need) in enumerate(prod):
                if over:
                    k = max(k, O.pstart + (i*(N - O.pstart))//len(prod))
                else:
                    while free[k] < 1: k += 1
                put(k, t, 1, need)
        if extra: extra(gaps, free, put, N)
        for i in range(N):
            if i % 16 == 0:
                nd = set(needs[i // 16])
                if i == bar_at: nd |= set(bar)
                p(f"s_waitcnt vmcnt(@{','.join(sorted(nd))}) lgkmcnt(0)" if nd else "s_waitcnt lgkmcnt(0)")
                if i == bar_at: p("s_barrier")
            p(mf[i])
            for t in gaps[i]: p(t)
        if name: print(f"{name}: free {sum(max(f,0) for f in free)} over {sum(-min(f,0) for f in free)}", file=sys.stderr)
def grp(kind, unit): return [(kind, unit, i) for i in range(3)]

def resolve(L, paths):
    best = {}
    for path in paths:
        cnt = 0; last = {}
        for i in path:
            t = L[i]
            m = re.search(r"vmcnt\(@([^)]*)\)", t)
            if m:
                for tag in m.group(1).split(","):
                    if tag in last: best[i] = min(best.get(i, 63), cnt - last[tag])
                best.setdefault(i, 63)
            elif re.match(r"\s*buffer_", t):
                cnt += 1
                m = re.search(r"; @(\w+)", t)
                if m: last[m.group(1)] = cnt
    for i, n in best.items():
        if n >= 63 and "lgkmcnt" in L[i]: L[i] = re.sub(r"vmcnt\(@[^)]*\) ", "", L[i])
        else: L[i] = re.sub(r"vmcnt\(@([^)]*)\)", f"vmcnt({n})", L[i]) + "  ; " + re.search(r"@([^)]*)", L[i]).group(1)
    assert not any("vmcnt(@" in t for t in L), [t for t in L if "vmcnt(@" in t][:3]

def lreduce():
    out = []
    for qb in range(4): out.append(f"v_add_f32 v{LS+2*qb}, v{LS+2*qb}, v{LS+2*qb+1}")
    for sw in ("v_permlane32_swap_b32", "v_permlane16_swap_b32"):
        for qb in range(4): out.append(f"v_mov_b32 v{LS+2*qb+1}, v{LS+2*qb}")
        out.append("s_nop 0")
        for qb in range(4): out.append(f"{sw} v{LS+2*qb}, v{LS+2*qb+1}")
        out.append("s_nop 0")
        for qb in range(4): out.append(f"v_add_f32 v{LS+2*qb}, v{LS+2*qb}, v{LS+2*qb+1}")
    return out
RL = 4
def ltranspose():
    out = []
    for qb in range(4): out.append(f"v_rcp_f32 v{LS+2*qb+1}, v{LS+2*qb}")
    out.append("s_nop 0")
    for qb in range(4): out.append(f"ds_write_b32 v20, v{LS+2*qb+1} offset:{qb*64}")
    out.append("s_waitcnt lgkmcnt(0)")
    for qb in range(4): out.append(f"ds_read_b128 {vr(RL+4*qb)}, v21 offset:{qb*64}")
    return out
def epi_addr(p):
    p("v_and_b32 v15, 15, v0\nv_lshrrev_b32 v16, 4, v0")
    p("v_mul_u32_u24 v22, 1536, v16\nv_lshl_add_u32 v22, v15, 3, v22")
    p("v_lshl_add_u32 v20, v15, 2, s70\nv_lshl_add_u32 v21, v16, 4, s70")
nstamp = [0]
def stamp(p, ver=None):
    if not O.stamps: return
    p(f"s_memtime s[{72+2*nstamp[0]}:{73+2*nstamp[0]}]"); nstamp[0] += 1

def qloads(p, lo, hi):
    for i in range(lo, hi):
        ks, qb = divmod(i, 4)
        p(f"buffer_load_dwordx4 {qreg(qb,ks)}, v{VQ}, s[4:7], {'s23' if qb == 0 else f's{53+qb}'} offen offset:{ks*64}{' nt' if O.qnt else ''} ; @Q")

def kernel():
    p = P(); K = NAME + "_kernel"
    p(K + ":")
    p("s_cmp_ge_u32 s2, 256\ns_cbranch_scc1 MAIN_END")
    p("s_load_dwordx16 s[72:87], s[0:1], 0\ns_load_dwordx4 s[88:91], s[0:1], 64")
    p("s_memrealtime s[98:99]")
    if O.stamps: p("s_memtime s[96:97]")
    p("v_lshrrev_b32 v4, 6, v0\nv_and_b32 v0, 63, v0\ns_nop 0\nv_readfirstlane_b32 s16, v4")
    p("s_and_b32 s17, s2, 7\ns_lshr_b32 s18, s2, 3\ns_lshl_b32 s17, s17, 2\ns_lshr_b32 s19, s18, 3\ns_add_u32 s17, s17, s19\ns_and_b32 s18, s18, 7")
    p("v_lshlrev_b32 v1, 4, v0\nv_add_u32 v2, 49152, v1\nv_add_u32 v3, 4096, v1")
    p("s_mul_i32 s22, s17, 786432\ns_mul_i32 s21, s16, 6144")
    p("s_and_b32 s19, s16, 1\ns_mul_i32 s20, s19, 6144")
    p("s_lshl_b32 s50, s18, 1\ns_add_u32 s50, s50, s19")
    p("s_mul_i32 s51, s50, 11\ns_lshr_b32 s51, s51, 5\ns_mul_i32 s52, s51, 3\ns_sub_u32 s52, s50, s52")
    p("s_lshl_b32 s19, s18, 2\ns_add_u32 s19, s19, s16\ns_mul_i32 s19, s19, 24576\ns_add_u32 s23, s22, s19")
    for qb in range(1, 4): p(f"s_add_u32 s{53+qb}, s23, {qb*6144}")
    p("v_and_b32 v15, 15, v0\nv_lshrrev_b32 v16, 4, v0")
    p(f"v_mul_u32_u24 v{VQ}, 384, v15\nv_lshl_add_u32 v{VQ}, v16, 4, v{VQ}")
    p(f"s_mov_b32 s61, {CFOLD}\ns_mov_b32 s62, 0xffff0000\ns_mov_b32 s53, 0\ns_mov_b32 s65, 0\ns_mov_b32 s57, 0")
    p(f"s_lshl_b32 s70, s16, 8\ns_add_u32 s70, s70, {LDS_T}")
    p("s_lshl_b32 s71, s22, 1\ns_lshl_b32 s66, s17, 3")
    p(f"s_add_u32 s67, s22, {WSV}")
    p("s_cmp_ge_u32 s16, 2\ns_cbranch_scc1 VER_B")
    c_end = p.n()
    seg = {}
    for ver in "AB":
        nstamp[0] = 0
        v0_ = p.n()
        step = kstep if ver == "A" else vstep
        if ver == "A":
            p("v_and_b32 v17, 7, v0\nv_lshrrev_b32 v18, 3, v0")
            p("v_and_b32 v19, 4, v17\nv_add_u32 v19, v19, v17")
            p(f"v_mul_u32_u24 v{VS1}, 768, v19\nv_lshl_add_u32 v{VS1}, v18, 5, v{VS1}\nv_add_u32 v{VS2}, 12288, v{VS1}")
            p(f"v_lshlrev_b32 v{VD1}, 8, v18\nv_lshl_add_u32 v{VD1}, v17, 4, v{VD1}\nv_add_u32 v{VD2}, 6144, v{VD1}\nv_lshlrev_b32 v{VC}, 4, v18")
            p(f"s_mul_i32 s{SX}, s51, 24576\ns_lshl_b32 s19, s52, 8\ns_add_u32 s{SX}, s{SX}, s19")
            p(f"s_mul_i32 s{SC}, s51, 384\ns_lshl_b32 s19, s52, 7\ns_add_u32 s{SC}, s{SC}, s19")
            p(f"s_mul_i32 s{SD}, s51, 12288\ns_lshl_b32 s19, s52, 11\ns_add_u32 s{SD}, s{SD}, s19")
            p("s_mul_i32 s68, s17, 24576\ns_waitcnt lgkmcnt(0)")
            srd(p, 24, 74, 71, 1572864); srd(p, 28, 78, 68, 24576); srd(p, 32, 80, 68, 24576); srd(p, 36, 90, 22, 786432)
            p("s_cmp_lt_u32 s50, 12\ns_cselect_b32 s26, s26, 0\ns_cselect_b32 s30, s30, 0\ns_cselect_b32 s34, s34, 0\ns_cselect_b32 s38, s38, 0")
            CI = 1536
        else:
            p("VER_B:")
            p(f"v_mul_u32_u24 v{VS1}, 6144, v16\nv_lshl_add_u32 v{VS1}, v15, 4, v{VS1}\nv_add_u32 v{VS2}, 3072, v{VS1}\nv_lshlrev_b32 v{VC}, 4, v16")
            p("s_sub_u32 s63, s51, 2")
            p(f"s_mul_i32 s{SX}, s63, 24576\ns_lshl_b32 s19, s52, 8\ns_add_u32 s{SX}, s{SX}, s19")
            p(f"s_lshl_b32 s{SC}, s63, 6")
            p(f"s_mul_i32 s{SD}, s63, 12288\ns_lshl_b32 s19, s52, 12\ns_add_u32 s{SD}, s{SD}, s19")
            p("s_lshl_b32 s68, s17, 12\ns_waitcnt lgkmcnt(0)")
            srd(p, 24, 76, 71, 1572864); srd(p, 28, 82, 68, 4096); srd(p, 32, 84, 68, 4096); srd(p, 36, 90, 67, 786432)
            p("s_cmp_lt_u32 s63, 2\ns_cselect_b32 s26, s26, 0\ns_cselect_b32 s30, s30, 0\ns_cselect_b32 s34, s34, 0\ns_cselect_b32 s38, s38, 0")
            CI = 256
        xload = kxload if ver == "A" else vxload
        xt = lambda i: f"X{(i//2) if ver == 'B' else (i//4)*2 + (i%4)//2}"
        adv = f"s_add_u32 s{SX}, s{SX}, 98304\ns_add_u32 s{SC}, s{SC}, {CI}"
        p("v_cmp_ne_u32 vcc, 0, v0\nv_mov_b32 v17, 4096\ns_lshl_b32 s19, s18, 2\ns_add_u32 s19, s19, s16\ns_lshl_b32 s19, s19, 2")
        if ver == "A":
            srd(p, 44, 88, 66, 8)
            p("s_cmp_eq_u32 s16, 0\ns_cselect_b32 s46, 8, 0\ns_lshl_b32 s49, s98, 5\ns_max_u32 s49, s49, 32")
            p(f"v_cndmask_b32 v{VAO}, 0, v17, vcc\nv_mov_b32 v18, s49\nv_mov_b32 v19, 0")
            p(f"buffer_atomic_cmpswap v[18:19], v{VAO}, s[44:47], 0 offen sc0 sc1 ; @TOK")
        emit_plain(p, cload(RAW, 0, f"s{SC}", 0, "CA") + cload(RAW, 1, f"s{SC}", 0, "CB"))
        emit_plain(p, [xload(XR, i, f"s{SX}", xt(i)) for i in range(8)])
        srd(p, 4, 72, 57, 25165824)
        qloads(p, 0, O.nqa)
        if ver == "B":
            p("s_cmp_lt_u32 s50, 12\ns_cselect_b32 s26, 1572864, 0\ns_cselect_b32 s30, 4096, 0\ns_cselect_b32 s34, 4096, 0\ns_cselect_b32 s64, 786432, 0")
        p(adv + f"\ns_add_u32 s63, s{SD}, 49152")
        p(f"v_mov_b32 v16, s19\nv_cndmask_b32 v{VAO}, v16, v17, vcc\nv_and_b32 v{VPL+1}, 31, v0\nv_lshlrev_b32 v{VPL+1}, 2, v{VPL+1}")
        p(f"s_lshl_b32 s19, s17, 12\ns_add_u32 s19, s19, {2*WSV}")
        srd(p, 12, 86, 57, 25165824); srd(p, 40, 90, 19, 128)
        if ver == "A":
            srd(p, 8, 90, 67, 786432)
            p("s_add_u32 s20, s20, 12288")
        else:
            srd(p, 8, 90, 22, 786432); srd(p, 44, 90, 67, 786432)
        epi_addr(p)
        p(f"v_mov_b32 v23, {LDS_AB}")
        stamp(p)
        retag = lambda it, a, b: [(t, (b if n and n.startswith(a) else n)) for t, n in it]
        if ver == "A":
            p(f"s_waitcnt vmcnt(@TOK)\nv_readfirstlane_b32 s19, v18\ns_cmp_eq_u32 s19, 0\ns_cselect_b32 s19, s49, s19\ns_lshl_b32 s49, s16, 2\nv_mov_b32 v18, s19\nv_add_u32 v17, s49, v23\nds_write_b32 v17, v18 offset:16\ns_waitcnt lgkmcnt(0)")
        p("s_barrier\nds_read_b32 v18, v23 offset:16")
        if ver == "A":
            emit_plain(p, kcoef(KA, RAW, 0, "CA") + kcoef(KA, RAW+1, 1) + kcoef(KB, RAW+2, 0, "CB") + kcoef(KB, RAW+3, 1))
            for s in range(4): emit_plain(p, kstep(s, XR, False))
        else:
            for s in range(4): emit_plain(p, vstep(s, XR, False))
            p("s_mov_b32 s38, s64")
        stamp(p)
        emit_plain(p, cload(RAW1, 0, f"s{SC}", 0, "C1") + cload(RAW1, 1, f"s{SC}", 0, "C1"))
        emit_plain(p, [xload(64, i, f"s{SX}", f"Y{xt(i)[1]}") for i in range(8)])
        p(adv)
        qloads(p, O.nqa, O.nqa + O.nqb)
        p(f"s_waitcnt lgkmcnt(0)\nv_add_u32 v{VAD}, 1, v18\nv_readfirstlane_b32 s48, v18\ns_add_u32 s48, s48, {1 if ver == 'B' else 2}")
        p("s_waitcnt vmcnt(@ST)")
        emit_plain(p, FLAG)
        stamp(p)
        def accinit():
            for i in range(192): p(f"v_accvgpr_write_b32 a{i}, 0")
            for i in range(8): p(f"v_mov_b32 v{LS+i}, 0")
        def round1():
            ry = lambda it: [(t, ("Y" + n[1] if n and n[0] == "X" else ("C1" if n else n))) for t, n in it]
            if ver == "A":
                emit_plain(p, kcoef(KA, RAW1, 0, "C1") + kcoef(KA, RAW1+1, 1) + kcoef(KB, RAW1+2, 0) + kcoef(KB, RAW1+3, 1))
                for s in range(4): emit_plain(p, ry(kstep(s, 64, False, "s63")))
            else:
                for s in range(4): emit_plain(p, ry(vstep(s, 64, False, "s63", RAW1)))
            p(f"s_add_u32 s{SD}, s{SD}, 98304")
        if ver == "B": p(POLL_LD)
        accinit(); round1()
        stamp(p)
        if ver == "B":
            emit_plain(p, poll_check("B0"))
            for t in (-2, -1, 0):
                for pr, d in dma_items(t):
                    if pr: p(pr + "\ns_nop 0")
                    p(d)
                p("s_add_u32 s20, s20, 12288")
            p("s_sub_u32 s19, s21, 12288")
            for pr, d in dma_items(0, "s[44:47]", "s19", -12288):
                if pr: p(pr + "\ns_nop 0")
                p(d)
            p("s_lshl_b32 s19, s16, 2\nv_add_u32 v17, s19, v23\nv_mov_b32 v18, s53\nds_write_b32 v17, v18")
        emit_plain(p, cload(RAW, 0, f"s{SC}", 0, "CA") + cload(RAW, 1, f"s{SC}", 0, "CB"))
        emit_plain(p, [xload(XR, i, f"s{SX}", xt(i)) for i in range(8)])
        p(adv)
        qloads(p, O.nqa + O.nqb, 24)
        p("s_waitcnt vmcnt(@ST)")
        emit_plain(p, FLAG)
        stamp(p)
        if ver == "A": emit_plain(p, kcoef(KA, RAW, 0, "CA") + kcoef(KA, RAW+1, 1) + cload(RAW, 0, f"s{SC}", 0, "CA"))
        npre = 2 + O.ph
        reload = kreload if ver == "A" else vreload
        for s in range(npre): emit_plain(p, step(s) + (reload(s) if s < npre - 1 or not O.late else []))
        stamp(p)
        p("s_waitcnt vmcnt(@Q,T2) lgkmcnt(0)\ns_barrier")
        if ver == "A":
            p("ds_read_b64 v[18:19], v23 offset:8\ns_waitcnt lgkmcnt(0)\nv_or_b32 v18, v18, v19\ns_nop 0\nv_readfirstlane_b32 s53, v18\ns_cmp_eq_u32 s53, 0\ns_cselect_b32 s10, s10, 0")
        stamp(p)
        st = Stream(p)
        for k in range(4): p(frag_read("qk", 0, k, 0))
        Bs = (3 - O.ph) % 4; Ba = (Bs + 2) % 4
        def args(j, pre=False):
            s_ = (j + O.ph) % 4
            a = dict(prod=step(s_) + ([] if O.late else reload(s_)), bar=[f"T{(j+1)%4}"], reload=reload((s_ - 1) % 4))
            if j == Ba and (not pre or O.ph == 2):
                a["bar"].append("ST"); a["after_bar"] = FLAG
            if j == (2 if pre else O.pollb): a["fixed"] = [(2 if pre else O.pollk, POLL_LD)]
            if j == 3: a["first"] = poll_check(ver + ("P" if pre else ""))
            return a
        st.body(grp("qk", 0), ("qk", 1, 0), dma_t=1, name=ver+"-2", **args(2, True))
        st.body(grp("qk", 1), ("pv", 0, 0), sm_unit=0, dma_t=2, cap=3, name=ver+"-1", **args(3, True))
        stamp(p)
        p("s_mov_b32 s57, 15")
        if O.dbg & 1: p("s_mov_b32 s26, 0\ns_mov_b32 s30, 0\ns_mov_b32 s34, 0")
        if O.dbg & 2: p("s_mov_b32 s38, 0")
        p(f".p2align 6\nLOOP_{ver}:")
        l0 = p.n()
        for n in range(4):
            st.body(grp("pv", n) + grp("qk", n+2), ("pv", n+1, 0), sm_unit=n+1, dma_t=n+3, name=f"{ver}{n}", **args(n))
        p(f"s_sub_u32 s57, s57, 1\ns_cmp_lg_u32 s57, 0\ns_cbranch_scc1 LOOP_{ver}")
        l1 = p.n()
        if ver == "A": p("s_branch TAIL")
        seg[ver] = (v0_, l0, l1, p.n())
    t0 = p.n()
    p("TAIL:")
    stamp(p)
    st.body(grp("pv", 4) + grp("qk", 6), ("pv", 5, 0), sm_unit=5, dma_t=7, bar=["T1"],
            prod=[("s_lshl_b32 s19, s16, 2", None), (f"s_add_u32 s19, s19, {LDS_AB}", None), ("v_mov_b32 v17, s19", None), ("v_mov_b32 v18, s53", None), ("ds_write_b32 v17, v18", None)])
    st.body(grp("pv", 5) + grp("qk", 7), ("pv", 6, 0), sm_unit=6, bar=["T2"], prod=[("ds_read_b128 v[56:59], v23", None)])
    st.body(grp("pv", 6), ("pv", 7, 0), sm_unit=7, bar=["T3"], cap=3)
    def ex(gaps, free, put, N):
        items = lreduce() + [f"v_max3_f32 v{TMP}, v{LS}, v{LS+2}, v{LS+4}", f"v_min3_f32 v{TMP+1}, v{LS}, v{LS+2}, v{LS+4}",
                 f"v_max_f32 v{TMP}, v{TMP}, v{LS+6}", f"v_min_f32 v{TMP+1}, v{TMP+1}, v{LS+6}", "v_or3_b32 v56, v56, v57, v58", "v_or_b32 v56, v56, v59",
                 f"v_cmp_nge_f32 s[66:67], s63, v{TMP}", f"v_cmp_nle_f32 s[68:69], s64, v{TMP+1}", "v_cmp_ne_u32 s[50:51], 0, v56"] + ltranspose()[:-5]
        k = 2
        for t in items:
            if t == "s_nop 0": k += 1; continue
            c = 2 if "rcp" in t else 1
            while free[k] < c: k += 1
            put(k, t, c)
            if c == 2: k += 1
        assert k < 32, k
        k = 33
        for t in ltranspose()[-4:]:
            while free[k] < 1: k += 1
            put(k, t)
    p(f"s_mov_b32 s63, {f2u(2.0**24)}\ns_mov_b32 s64, {f2u(2.0**-24)}")
    st.body(grp("pv", 7), None, extra=ex)
    p("s_or_b64 s[66:67], s[66:67], s[68:69]\ns_or_b64 s[66:67], s[66:67], s[50:51]\ns_cbranch_scc1 SLOW" if not O.dbg else "s_nop 0")
    p("STORE:")
    e0 = p.n()
    stamp(p)
    p("s_waitcnt lgkmcnt(0)\ns_nop 4")
    for ri, (qb, i) in enumerate([(qb, i) for qb in range(4) for i in range(4)]):
        t = 24 + (ri % 3)*12; o = 64 + (ri % 8)*8
        for db in range(12): p(f"v_accvgpr_read_b32 v{t+db}, a{(qb*12+db)*4+i}")
        for db in range(12): p(f"v_mul_f32 v{t+db}, v{t+db}, v{RL+4*qb+i}")
        for j in range(6): p(f"v_cvt_pk_bf16_f32 v{o+j}, v{t+2*j}, v{t+2*j+1}")
        for pp in range(3): p(f"buffer_store_dwordx2 {vr(o+2*pp,2)}, v22, s[12:15], {'s23' if qb == 0 else f's{53+qb}'} offen offset:{i*384 + pp*128}")
    if O.stamps:
        stamp(p); p("s_waitcnt vmcnt(0)"); stamp(p)
        p("s_load_dwordx2 s[24:25], s[0:1], 72\ns_memrealtime s[100:101]\ns_waitcnt lgkmcnt(0)")
        p("s_lshl_b32 s30, s2, 2\ns_add_u32 s30, s30, s16\ns_lshl_b32 s30, s30, 6")
        p("s_add_u32 s24, s24, 0x4000000\ns_addc_u32 s25, s25, 0\ns_mov_b32 s26, 0x100000\ns_mov_b32 s27, 0x00020000")
        assert nstamp[0] <= 10 + 2, nstamp
        for k, sr in enumerate([96] + [72 + 2*i for i in range(12)] + [98, 100, 65]): p(f"v_mov_b32 v{24+k}, s{sr}")
        p("v_mov_b32 v40, s30\ns_mov_b64 exec, 1")
        for k in range(4): p(f"buffer_store_dwordx4 v[{24+4*k}:{27+4*k}], v40, s[24:27], 0 offen offset:{16*k}")
    p("MAIN_END:\ns_endpgm")
    main_end = p.n()
    for lbl in ("A", "B", "B0", "AP", "BP"): spin_block(p, lbl)
    sl0 = p.n()
    slow(p)
    R = lambda a, b: list(range(a, b))
    paths = []
    for ver in "AB":
        a, l0, l1, e = seg[ver]
        paths.append(R(0, c_end) + R(a, l1) + R(l0, l1) + R(l0, e) + R(t0, main_end))
    resolve(p.L, paths)
    probs = []
    for ver, path in zip("AB", paths): probs += asmlib.check([p.L[i] for i in path], ver)
    probs += asmlib.check(p.L[sl0:] + p.L[e0:main_end], "slow")
    return p, probs

def slow(p):
    NEG = 128; MX = TMP; XS = 224; FR = 160; CS = 24; CU = 32
    p("SLOW:\ns_waitcnt vmcnt(0) lgkmcnt(0)\ns_load_dwordx16 s[72:87], s[0:1], 0")
    p("s_mul_i32 s68, s17, 24576\ns_lshl_b32 s69, s17, 12")
    p("v_and_b32 v15, 15, v0\nv_lshrrev_b32 v16, 4, v0")
    p("v_lshrrev_b32 v17, 2, v15\nv_lshlrev_b32 v17, 2, v17\nv_add_u32 v17, v17, v15\nv_mul_u32_u24 v4, 768, v17\nv_lshl_add_u32 v4, v16, 5, v4")
    p("v_lshlrev_b32 v5, 4, v16")
    p("v_mul_u32_u24 v6, 6144, v16\nv_lshl_add_u32 v6, v15, 4, v6\nv_add_u32 v7, 3072, v6")
    p("s_waitcnt lgkmcnt(0)")
    srd(p, 24, 74, 71, 1572864); srd(p, 28, 78, 68, 24576); srd(p, 32, 80, 68, 24576)
    srd(p, 36, 76, 71, 1572864); srd(p, 40, 82, 69, 4096); srd(p, 44, 84, 69, 4096)
    def qk(czero):
        for ks in range(6):
            p(f"buffer_load_dwordx4 {vr(CS)}, v5, s[28:31], s59 offen offset:{ks*64}\nbuffer_load_dwordx4 {vr(CS+4)}, v5, s[32:35], s59 offen offset:{ks*64}")
            for tb in range(2):
                for h in range(2): p(f"buffer_load_dwordx4 {vr(XS+8*tb+4*h)}, v4, s[24:27], s58 offen offset:{tb*3072 + ks*128 + h*16}")
            p("s_waitcnt vmcnt(0)")
            for h in range(2):
                for q in range(2):
                    for t, _ in kcoef(CU + 8*h, CS + 2*h + q, q): p(t)
            for tb in range(2):
                for h in range(2):
                    for t, _ in kdata(XS + 8*tb + 4*h, CU + 8*h, FR + 4*tb + 2*h): p(t)
            p("s_nop 1")
            for tb in range(2):
                for qb in range(4):
                    d = vr(sreg(0, qb, tb)); c = ("0" if czero else vr(NEG+4*qb)) if ks == 0 else d
                    p(f"v_mfma_f32_16x16x32_bf16 {d}, {vr(FR+4*tb)}, {qreg(qb,ks)}, {c}")
            p("s_nop 7")
    for qb in range(4): p(f"v_mov_b32 v{MX+qb}, 0xff800000")
    p("s_mov_b32 s58, 0\ns_mov_b32 s59, 0\ns_mov_b32 s57, 64\nSLOW1:")
    qk(True)
    for qb in range(4):
        b = sreg(0, qb, 0)
        for h in range(4): p(f"v_max3_f32 v{MX+qb}, v{MX+qb}, v{b+2*h}, v{b+2*h+1}")
    p("s_add_u32 s58, s58, 24576\ns_add_u32 s59, s59, 384\ns_sub_u32 s57, s57, 1\ns_cmp_lg_u32 s57, 0\ns_cbranch_scc1 SLOW1")
    for sw in ("v_permlane32_swap_b32", "v_permlane16_swap_b32"):
        for qb in range(4): p(f"v_mov_b32 v{MX+4+qb}, v{MX+qb}")
        p("s_nop 1")
        for qb in range(4): p(f"{sw} v{MX+qb}, v{MX+4+qb}")
        p("s_nop 1")
        for qb in range(4): p(f"v_max_f32 v{MX+qb}, v{MX+qb}, v{MX+4+qb}")
    for qb in range(4):
        for i in range(4): p(f"v_sub_f32 v{NEG+4*qb+i}, 0, v{MX+qb}")
    for i in range(192): p(f"v_accvgpr_write_b32 a{i}, 0")
    for i in range(8): p(f"v_mov_b32 v{LS+i}, 0")
    p("s_mov_b32 s58, 0\ns_mov_b32 s59, 0\ns_mov_b32 s60, 0\ns_mov_b32 s57, 64\nSLOW2:")
    qk(False)
    E, Pst = softmax_items(0)
    for t, _ in E: p(t)
    for t, _ in Pst: p(t)
    p(f"buffer_load_dwordx4 {vr(CS)}, v5, s[40:43], s60 offen\nbuffer_load_dwordx4 {vr(CS+4)}, v5, s[44:47], s60 offen\ns_waitcnt vmcnt(0)")
    for s in range(4):
        a, b = CU + 2*s, CU + 8 + 2*s
        p(f"v_lshlrev_b32 v{a}, 16, v{CS+s}\nv_and_b32 v{a+1}, s62, v{CS+s}\nv_lshlrev_b32 v{b}, 16, v{CS+4+s}\nv_and_b32 v{b+1}, s62, v{CS+4+s}\nv_mul_f32 v{b}, -v{b}, v{a}\nv_mul_f32 v{b+1}, -v{b+1}, v{a+1}")
    for pp in range(3):
        for j in range(8): p(f"buffer_load_dwordx4 {vr(XS+4*j)}, {'v6' if j < 4 else 'v7'}, s[36:39], s58 offen offset:{(j%4)*768 + pp*256}")
        p("s_waitcnt vmcnt(0)")
        for j in range(8):
            for e in range(4): p(f"v_cvt_f32_i32 v{XS+4*j+e}, v{XS+4*j+e}")
            for e in range(4): p(f"v_fma_f32 v{XS+4*j+e}, v{XS+4*j+e}, v{CU+j}, v{CU+8+j}")
        for e in range(4):
            for s in range(4): p(f"v_cvt_pk_bf16_f32 v{FR+4*e+s}, v{XS+8*s+e}, v{XS+8*s+4+e}")
        p("s_nop 1")
        for e in range(4):
            for qb in range(4): p(f"v_mfma_f32_16x16x32_bf16 {oreg(qb,4*pp+e)}, {vr(sreg(0,qb,0))}, {vr(FR+4*e)}, {oreg(qb,4*pp+e)}")
        p("s_nop 7")
    p("s_add_u32 s58, s58, 24576\ns_add_u32 s59, s59, 384\ns_add_u32 s60, s60, 64\ns_sub_u32 s57, s57, 1\ns_cmp_lg_u32 s57, 0\ns_cbranch_scc1 SLOW2")
    epi_addr(p)
    for t in lreduce(): p(t if t != "s_nop 0" else "s_nop 1")
    for t in ltranspose(): p(t)
    p("s_branch STORE")

def build(path):
    K = NAME + "_kernel"
    pm, probs = kernel()
    for x in probs[:30]: print("PROBLEM", x, file=sys.stderr)
    s = f"; generated by dev/gen2.py\n; @launch grid=(256,1,1) block=(256,1,1) lds={LDS_AB + 64}\n"
    s += '.amdgcn_target "amdgcn-amd-amdhsa--gfx950"\n.text\n'
    s += f".globl {K}\n.p2align 8\n.type {K},@function\n" + "\n".join(pm.L) + "\n"
    s += f""".section .rodata,"a"
.p2align 6
.amdhsa_kernel {K}
  .amdhsa_next_free_vgpr 512
  .amdhsa_next_free_sgpr 102
  .amdhsa_accum_offset 256
  .amdhsa_group_segment_fixed_size 0
  .amdhsa_kernarg_size 80
  .amdhsa_user_sgpr_count 2
  .amdhsa_user_sgpr_kernarg_segment_ptr 1
  .amdhsa_system_sgpr_workgroup_id_x 1
.end_amdhsa_kernel
"""
    if not O.dsc1: s = s.replace(" sc1 lds", " lds")
    if not O.ssc1: s = s.replace(" sc1 ; @ST", " ; @ST")
    open(path, "w").write(s)
    return probs
if __name__ == "__main__":
    path = sys.argv[1] if len(sys.argv) > 1 else f"cdna_kernels/{NAME}.s"
    for a in sys.argv[2:]:
        k, v = a.split("="); setattr(O, k, int(v))
    build(path)
```
